```python
import torch

def _softmax(x, axis=-1):
    return torch.softmax(x, dim=axis)
def _gelu(x):
    return torch.nn.functional.gelu(x, approximate="tanh")
def _silu(x):
    return torch.nn.functional.silu(x)
def _sigmoid(x):
    return torch.sigmoid(x)
def _layernorm(x, axis=-1, eps=1e-5):
    m = x.mean(dim=axis, keepdim=True)
    v = x.var(dim=axis, keepdim=True, unbiased=False)
    return (x - m) / torch.sqrt(v + eps)
def _scatter_add(tgt, idx, src, axis=0):
    return tgt.clone().index_add_(axis, idx, src)
def _segment_sum(src, seg, n):
    out = torch.zeros((n,) + src.shape[1:], dtype=src.dtype)
    return out.index_add_(0, seg, src)
def _pad(x, pw):
    flat = tuple(v for pair in reversed(pw) for v in pair)
    return torch.nn.functional.pad(x, flat)

kernel_name = 'sequential_preLN__mha_block_cached__dense_activation_silu__decode'

def setup_inputs():

    _w = (lambda a: (lambda t: t.to(torch.bfloat16) if t.is_floating_point() else t)(torch.as_tensor(a)))
    def _A_setup():
        B, Sq, D = 1, 1, 512
        H, Sk, Dh = 32, 16384, 128
        return {
            "x": _w((lambda *s: torch.randn(*s, dtype=torch.bfloat16) * 0.1)(B, Sq, D)),
            "k_cache": _w((lambda *s: torch.randn(*s, dtype=torch.bfloat16) * 1.6)(B, H, Sk, Dh)),
            "v_cache": _w((lambda *s: torch.randn(*s, dtype=torch.bfloat16) * 1.6)(B, H, Sk, Dh)),
            "wq": _w((lambda *s: torch.randn(*s, dtype=torch.bfloat16) * 1.6)(D, H * Dh) * (D ** -0.5)),
            "wo": _w((lambda *s: torch.randn(*s, dtype=torch.bfloat16) * 1.6)(H * Dh, D) * ((H * Dh) ** -0.5)),
        }
    _A_in = _A_setup()

    def _B_setup():
        B, S, D, F = 1, 1, 512, 1792
        return {
            "x": _w((lambda *s: torch.randn(*s, dtype=torch.bfloat16) * 0.1)(B, S, D)),
            "w1": _w((lambda *s: torch.randn(*s, dtype=torch.bfloat16) * 3.2)(D, F) * (D ** -0.5)),
            "w2": _w((lambda *s: torch.randn(*s, dtype=torch.bfloat16) * 3.2)(F, D) * (F ** -0.5)),
        }
    _B_in = _B_setup()

    return {
        "A_x": _A_in["x"],
        "A_k_cache": _A_in["k_cache"],
        "A_v_cache": _A_in["v_cache"],
        "A_wq": _A_in["wq"],
        "A_wo": _A_in["wo"],
        "B_x": _B_in["x"],
        "B_w1": _B_in["w1"],
        "B_w2": _B_in["w2"],
    }

def reference(A_x, A_k_cache, A_v_cache, A_wq, A_wo, B_x, B_w1, B_w2):
    def _A_ref(x, k_cache, v_cache, wq, wo):
        B, Sq, D = x.shape
        H, Dh = 32, 128
        q = (lambda x, *d: x.permute(*d))((x @ wq).reshape(B, Sq, H, Dh), 0, 2, 1, 3)
        scores = torch.einsum("bhqd,bhkd->bhqk", q, k_cache) * (Dh ** -0.5)
        p = _softmax(scores, axis=-1)
        o = torch.einsum("bhqk,bhkd->bhqd", p, v_cache)
        return (lambda x, *d: x.permute(*d))(o, 0, 2, 1, 3).reshape(B, Sq, H * Dh) @ wo

    def _B_ref(x, w1, w2):
        h = torch.einsum("bsd,df->bsf", x, w1)
        h = _silu(h)
        out = torch.einsum("bsf,fd->bsd", h, w2)
        return out

    x = A_x
    h = x + _A_ref(_layernorm(x, axis=-1), A_k_cache, A_v_cache, A_wq, A_wo)
    h2 = h + _B_ref(_layernorm(h, axis=-1), B_w1, B_w2)
    return h2
```

```python
import re
TRANS = ("v_exp_f32", "v_log_f32", "v_rcp_f32", "v_rsq_f32", "v_sqrt_f32", "v_sin_f32", "v_cos_f32")
def regs(tok):
    tok = tok.strip()
    if tok.startswith("-"): tok = tok[1:]
    if tok.startswith("abs(") or tok.startswith("|"): tok = tok.strip("abs(|)")
    m = re.fullmatch(r"([vsa])(\d+)", tok)
    if m: return {(m.group(1), int(m.group(2)))}
    m = re.fullmatch(r"([vsa])\[(\d+):(\d+)\]", tok)
    if m: return {(m.group(1), i) for i in range(int(m.group(2)), int(m.group(3)) + 1)}
    if tok == "vcc": return {("s", "vcc")}
    if tok == "exec": return {("s", "exec")}
    if tok == "m0": return {("s", "m0")}
    return set()
class Ins:
    def __init__(self, text):
        self.text = text
        t = text.split(";")[0].strip()
        self.label = t.endswith(":")
        self.dir = t.startswith(".") or t == ""
        self.op = t.split()[0] if t and not self.label else ""
        rest = t[len(self.op):].strip() if self.op else ""
        parts = [p.strip() for p in re.split(r",(?![^\[]*\])", rest)] if rest else []
        self.mods = ""
        if parts:
            last = parts[-1].split(None, 1)
            if len(last) > 1: parts[-1], self.mods = last[0], last[1]
        self.ops = parts
        op = self.op
        base = re.sub(r"_(e32|e64|dpp|sdwa)$", "", op); self.base = base
        self.mfma = op.startswith(("v_mfma", "v_smfmac"))
        self.valu = op.startswith("v_") and not self.mfma
        self.trans = base in TRANS
        self.dl = op.startswith("v_dot")
        self.dpp = op.endswith("_dpp") or "row_" in self.mods or "quad_perm" in self.mods
        self.vmem = op.startswith(("buffer_", "global_", "flat_"))
        self.ds = op.startswith("ds_")
        self.salu = op.startswith("s_")
        self.rl = base in ("v_readlane_b32", "v_readfirstlane_b32", "v_writelane_b32")
        self.perml = op.startswith("v_permlane")
        self.ldsdma = self.vmem and (" lds" in (" " + self.mods) or "load_lds" in op)
        R = [regs(p) for p in parts]
        self.w = set(); self.r = set(); self.srcc = set(); self.ab = set(); self.sdata = set()
        if op.startswith("v_smfmac"):
            self.w = R[0]; self.ab = R[1] | R[2] | R[3]; self.srcc = set(R[0]); self.r = self.ab | self.srcc
        elif self.mfma:
            self.w = R[0]; self.ab = R[1] | R[2]; self.srcc = R[3]; self.r = self.ab | self.srcc
        elif self.valu:
            self.w = set(R[0]); srcs = R[1:]
            if base in ("v_add_co_u32", "v_sub_co_u32", "v_addc_co_u32", "v_subb_co_u32"): self.w |= R[1]; srcs = R[2:]
            for s in srcs: self.r |= s
            if base.startswith(("v_fmac", "v_dot2c", "v_writelane")): self.r |= R[0]
            if base == "v_dot2c_f32_bf16": self.srcc = set(R[0]); self.ab = R[1] | R[2]
            if base == "v_dot2_f32_bf16": self.srcc = set(R[3]); self.ab = R[1] | R[2]
            if self.perml: self.w |= R[1]; self.r |= R[0]
            if base.startswith("v_cmpx"): raise ValueError("no cmpx")
        elif self.vmem:
            isst = "store" in op or "atomic" in op
            if self.ldsdma:
                for s in R: self.r |= s
                self.r |= {("s", "m0")}
            elif isst:
                for s in R: self.r |= s
                if op.startswith("buffer_"): self.sdata = R[0]
                else: self.sdata = R[1] if len(R) == 3 else R[2]
                if "atomic" in op and "sc0" in self.mods: self.w = R[0]
            elif op in ("buffer_inv", "buffer_wbl2"): pass
            else:
                self.w = R[0]
                for s in R[1:]: self.r |= s
        elif self.ds:
            if "write" in op or op in ("ds_add_f32", "ds_add_u32"):
                for s in R: self.r |= s
            else:
                self.w = R[0]
                for s in R[1:]: self.r |= s
        elif self.salu and parts:
            if op.startswith(("s_cmp", "s_cbranch", "s_branch", "s_waitcnt", "s_nop", "s_sleep", "s_setprio", "s_bitcmp", "s_barrier")):
                for s in R: self.r |= s
            else:
                self.w = set(R[0])
                for s in R[1:]: self.r |= s
                if "saveexec" in op: self.w |= {("s", "exec")}
        self.states = 0 if (self.label or self.dir) else 1
        if op == "s_nop": self.states = int(parts[0], 0) + 1
def need(P, C):
    n = 0
    pv = {x for x in P.w if x[0] == "v"}; ps = {x for x in P.w if x[0] == "s"}
    if P.valu:
        if pv & C.r:
            if C.dpp: n = max(n, 2)
            if C.rl: n = max(n, 1)
            if C.perml: n = max(n, 2)
            if C.mfma: n = max(n, 2)
            if P.trans and C.valu and not C.trans: n = max(n, 1)
        if ps & C.r:
            if C.valu: n = max(n, 4 if C.rl else 2)
            if C.vmem: n = max(n, 5)
        if P.dl and (pv & (C.r | C.w)):
            if C.dl and C.base == P.base and not (pv & C.ab): pass
            else: n = max(n, 3)
    if P.mfma:
        assert "16x16x32_bf16" in P.op or "smfmac_f32_16x16x64_bf16" in P.op
        if C.mfma:
            if P.w & C.ab: n = max(n, 8)
            if P.w & C.srcc and P.w != C.srcc: n = max(n, 6)
            if P.w & C.w and not (P.w & C.srcc): n = max(n, 8)
        elif P.w & (C.r | C.w): n = max(n, 8)
        if C.valu and (P.srcc & C.w): n = max(n, 3)
    if P.vmem and len(P.sdata) > 2 and (P.sdata & C.w): n = max(n, 2)
    if P.salu and ("s", "m0") in P.w and C.ldsdma: n = max(n, 1)
    return n
class Asm:
    def __init__(self): self.L = []
    def __call__(self, text):
        for line in text.split("\n"):
            if line.strip(): self.L.append(line.strip())
    def finish(self):
        out = []
        for t in self.L:
            C = Ins(t)
            if C.states and C.op != "s_nop":
                d = 0; pad = 0
                for P in reversed(out):
                    if P.op in ("s_branch", "s_endpgm"): break
                    if P.states:
                        pad = max(pad, need(P, C) - d)
                    d += P.states
                    if d > 20: break
                if pad > 0: out.append(Ins(f"s_nop {pad-1}"))
            out.append(C)
        lab = {i.text.split(";")[0].strip()[:-1]: k for k, i in enumerate(out) if i.label}
        for k, B in enumerate(out):
            if B.op.startswith(("s_cbranch", "s_branch")):
                tgt = lab[B.ops[0]]
                dc = 0
                for C in out[tgt:tgt + 40]:
                    if C.states:
                        d = dc
                        for P in reversed(out[max(0, k - 30):k + 1]):
                            if P is not B and P.op in ("s_branch", "s_endpgm"): break
                            if P.states and need(P, C) > d:
                                raise ValueError(f"hazard across branch {B.text}: {P.text} -> {C.text} need {need(P,C)} have {d}")
                            d += P.states
                            if d > 20: break
                    dc += C.states
                    if dc > 20 or C.op in ("s_branch", "s_endpgm"): break
        return "\n".join((i.text if (i.label or i.dir) else "    " + i.text) for i in out) + "\n"
```

```python
import sys, struct, json
from asmlib import Asm
KN = "sequential_preLN__mha_block_cached__dense_activation_silu__decode_kernel"
HDR = open("sequential_preLN__mha_block_cached__dense_activation_silu__decode.s.ref").read().split("; Override launch")[0]
def f32(x): return "0x%08x" % struct.unpack("<I", struct.pack("<f", x))[0]
XCO = 0x4000
E_OFF, P1ML, P1O, QP, YOFF, ZOFF, Z2OFF, WS_USED = 0, 0x60000, 0x10000, 0x20000, 0x40000, 0x44000, 0x52000, 0x200000
W2OFF, W2ST = 65536, 1056
QB, H1B, MLB, FLG, TAGB, HB, YB, PART, LDS_SIZE = 0x20800, 0x20900, 0x20980, 0x209C0, 0x209F0, 0x20A00, 0x21000, 0x21A00, 0x23A00
NST = 20
SCALE, LOG2E = f32(128 ** -0.5), f32(1.4426950408889634)
FULL = "row_mask:0xf bank_mask:0xf"
RED = ("quad_perm:[1,0,3,2] " + FULL, "quad_perm:[2,3,0,1] " + FULL, "row_half_mirror " + FULL, "row_mirror " + FULL,
       "row_bcast:15 row_mask:0xa bank_mask:0xf", "row_bcast:31 row_mask:0xc bank_mask:0xf")

DOC = """; Written through the author's own generator script (no compiler output).
"""
def gen(N=3, NE=4, gate=True, qflag=True, zmode=0, forcefar=False, NW=3, NM=3, oracle=None, NL=2, bm=(21, 20, 19), bt=(15, 16, 17, 18), i0=1024, i1=11, alt=4, NV=None, mlmode=3, rot=0, prio=0, slp=0, N0=0, NP0=None, NP1=None, M1=False, prez=True, outsc=False, eearly=True, warm='14s', PP2=1, PP3=2, PP4=2, ZTRY=64, PQ=1, stamps=False, spin=1 << 22, kvf=' nt', wf=' nt', probe=None, probe_wg=1,
        notail=False, nodma=False, noq=False, even=False, nobar=False, nowq=False, dmalin=False, noml=False, norst=False, rst4=True, rstlate=0, NKE=None, KEJ=0, NV0=None, thr=1, thrmin=2, fj=1, ck=(7,), cv=(), CD=12, wb=0, qsel=False, qack=True, qnt=False, p14=True, qdel=1, ydual=False, yforce=None, nogat=False):
    A = Asm()
    def W(n, i): return (n[i] if isinstance(n, (list, tuple)) else n) - 1
    def stamp(i):
        if stamps: A(f"s_memrealtime s[{64+2*i}:{65+2*i}]")
    def wstamp(i):
        if stamps: A(f"s_memrealtime s[{72+2*i}:{73+2*i}]")
    def wflush():
        if stamps and probe is None:
            A("s_cmp_lg_u32 s3, 0\ns_cbranch_scc1 L_end")
            setexec(1)
            A(f"s_add_u32 s24, s24, 0x10000000\ns_addc_u32 s25, s25, 0\ns_mul_i32 s48, s2, {NST*8}\nv_mov_b32 v5, s48\ns_waitcnt lgkmcnt(0)")
            for i in range(0, 16, 4):
                for n in range(4): A(f"v_mov_b32 v{8+n}, s{72+i+n}")
                A(f"global_store_dwordx4 v5, v[8:11], s[24:25] offset:{96+i*4}")
    def srd(d, lo, hi, size):
        A(f"s_mov_b32 s{d}, {lo}\ns_mov_b32 s{d+1}, {hi}\ns_mov_b32 s{d+2}, {size}\ns_mov_b32 s{d+3}, 0x20000")
    def rbf(r): A(f"v_cvt_pk_bf16_f32 v{r}, v{r}, v{r}\nv_lshlrev_b32 v{r}, 16, v{r}")
    def setexec(mask):
        if mask == -1: A("s_mov_b64 exec, -1")
        elif mask == 1: A("s_mov_b64 exec, 1")
        else: A(f"s_mov_b32 exec_lo, {hex(mask & 0xffffffff)}\ns_mov_b32 exec_hi, {hex(mask >> 32)}")
    def masks():
        A("v_and_b32 v22, 1, v1\nv_lshlrev_b32 v22, 4, v22\nv_mov_b32 v23, 0xffff\nv_lshlrev_b32 v22, v22, v23")
        A("v_bfe_u32 v23, v1, 1, 3")
        for n in range(4): A(f"v_cmp_eq_u32 vcc, {n}, v23\nv_cndmask_b32 v{12+n}, 0, v22, vcc")
    def poll_head(lab): A(f"{lab}:\ns_sub_u32 s62, s62, 1\ns_cmp_lt_i32 s62, 0\ns_cbranch_scc1 {lab}go")
    def ppoll(lab, sets, nld, issue, check, onok, tmo=None):
        P = len(sets)
        for b_ in sets[:-1]: issue(b_)
        A(f"{lab}:\ns_sub_u32 s62, s62, 1\ns_cmp_lt_i32 s62, 0\ns_cbranch_scc1 {tmo or lab+'ok0'}")
        for k in range(P):
            issue(sets[(k + P - 1) % P])
            A(f"s_waitcnt vmcnt({nld*(P-1)})")
            check(sets[k])
            A(f"s_cbranch_vccz {lab}ok{k}" if k < P - 1 else f"s_cbranch_vccnz {lab}")
        for k in reversed(range(P)):
            A(f"{lab}ok{k}:"); onok(sets[k])
            if k: A(f"s_branch {lab}done")
        A(f"{lab}done:")
    def chk_sent(regs_, t0, t1):
        r = list(regs_)
        A(f"v_max3_u32 v{t0}, v{r[0]}, v{r[1]}, v{r[2]}\nv_max3_u32 v{t1}, v{r[3]}, v{r[4]}, v{r[5]}"); r = r[6:]; k = 0
        while len(r) >= 2:
            t = (t0, t1)[k & 1]; A(f"v_max3_u32 v{t}, v{t}, v{r[0]}, v{r[1]}"); r = r[2:]; k += 1
        A(f"v_max_u32 v{t0}, v{t0}, v{t1}\nv_cmp_eq_u32 vcc, -1, v{t0}")
    def chk_tag(regs_, T, tmp, T2=None):
        t = list(regs_)
        for r in t: A(f"v_xor_b32 v{r}, v{r}, v{T2 if (T2 is not None and r >= t[12]) else T}")
        k = 0
        while len(t) > 2:
            nt = []
            while len(t) >= 3: A(f"v_or3_b32 v{tmp+k}, v{t[0]}, v{t[1]}, v{t[2]}"); nt.append(tmp + k); k += 1; t = t[3:]
            t = nt + t
        A(f"v_bitop3_b32 v{tmp}, v{t[0]}, v{t[-1]}, s63 bitop3:0xa8\nv_cmp_ne_u32 vcc, 0, v{tmp}")
    def puttag(d, s_, T): A(f"v_bfi_b32 v{d}, s63, v{T}, v{s_}")
    def tred(a, dst=None):
        A(f"v_permlane32_swap_b32 v{a}, v{a+1}\nv_permlane32_swap_b32 v{a+2}, v{a+3}")
        A(f"v_add_f32 v{a}, v{a}, v{a+1}\nv_add_f32 v{a+2}, v{a+2}, v{a+3}\nv_permlane16_swap_b32 v{a}, v{a+2}\nv_add_f32 v{a if dst is None else dst}, v{a}, v{a+2}")
    def rowperm(dst, row, tmp):
        A(f"v_and_b32 v{dst}, 1, v{row}\nv_lshlrev_b32 v{dst}, 1, v{dst}\nv_lshrrev_b32 v{tmp}, 1, v{row}\nv_or_b32 v{dst}, v{dst}, v{tmp}")
    def pos(dst, src, tmp):
        A(f"v_and_b32 v{dst}, 0xffffffe3, v{src}\nv_bfe_u32 v{tmp}, v{src}, 2, 2\nv_lshl_add_u32 v{dst}, v{tmp}, 3, v{dst}")
        A(f"v_bfe_u32 v{tmp}, v{src}, 4, 1\nv_lshl_add_u32 v{dst}, v{tmp}, 2, v{dst}")
    A(f"{KN}:")
    A("s_cmp_ge_u32 s2, 256\ns_cbranch_scc1 L_end")
    A("s_load_dwordx16 s[4:19], s[0:1], 0\ns_load_dwordx2 s[24:25], s[0:1], 80")
    A("v_lshrrev_b32 v2, 6, v0\nv_and_b32 v1, 63, v0\nv_readfirstlane_b32 s3, v2")
    A("s_lshr_b32 s26, s2, 3\ns_and_b32 s27, s2, 7")
    A("s_cmp_eq_u32 s27, 0\ns_cselect_b32 s60, 1, 0\ns_cmp_ge_u32 s26, 28\ns_cselect_b32 s61, 8, 1\ns_cmp_eq_u32 s61, s27\ns_cselect_b32 s60, 2, s60")
    A(f"s_mov_b32 s62, {spin}\ns_movk_i32 s63, 0xff")
    A("s_cmp_eq_u32 s3, 8\ns_cbranch_scc1 L_service")
    SL = [48, 64, 80, 96]; MS = 112; DV = 120
    A(f"v_lshlrev_b32 v2, 12, v2\nv_lshl_add_u32 v2, v1, 4, v2\nv_xor_b32 v5, {hex(i0)}, v2")
    def itoff(it): return sum(((it >> k) & 1) << bt[k] for k in range(4))
    STEP = [(itoff(j + 1) - itoff(j)) & 0xffffffff for j in range(3)]
    def step(j):
        if j < 3: A(f"s_add_u32 s48, s48, {hex(STEP[j])}")
        else: A(f"s_add_u32 s34, s34, 1\ns_and_b32 s48, s34, 1\ns_lshl_b32 s48, s48, {bt[2]}\ns_bfe_u32 s35, s34, 0x10001\ns_lshl_b32 s35, s35, {bt[3]}\ns_add_u32 s48, s48, s35\ns_add_u32 s48, s48, s93")
        if alt and (j + 1) % alt == 0: A("v_xor_b32 v2, 0x2000, v2\nv_xor_b32 v5, 0x2000, v5")
    A("s_lshl_b32 s53, s27, 2\ns_lshr_b32 s53, 0x65421073, s53\ns_and_b32 s52, s53, 1\ns_bfe_u32 s50, s53, 0x10001\ns_bfe_u32 s53, s53, 0x10002")
    A(f"s_lshl_b32 s53, s53, {bm[0]}\ns_lshl_b32 s52, s52, {i1}\ns_add_u32 s53, s53, s52\ns_lshl_b32 s50, s50, {bt[0]}\ns_add_u32 s53, s53, s50")
    A(f"s_and_b32 s93, s27, 1\ns_lshl_b32 s93, s93, {bm[0]}\ns_bfe_u32 s50, s27, 0x10001\ns_lshl_b32 s50, s50, {bm[1]}\ns_add_u32 s93, s93, s50\ns_lshr_b32 s50, s27, 2\ns_lshl_b32 s50, s50, {bm[2]}\ns_add_u32 s93, s93, s50")
    A("s_lshl_b32 s49, s26, 22\ns_mov_b32 s48, s93\ns_mov_b32 s34, 0\ns_mov_b32 s30, 0x400000\ns_mov_b32 s31, 0x20000")
    A("s_waitcnt lgkmcnt(0)")
    A("s_add_u32 s28, s6, s49\ns_addc_u32 s29, s7, 0")
    assert i1 in (10, 11)
    def ldm(i):
        if not even: A(f"buffer_load_dwordx4 v[{MS+4*i}:{MS+4*i+3}], v{5 if i else 2}, s[28:31], s53 offen{kvf}")
    def ld(S, i): A(f"buffer_load_dwordx4 v[{S+4*i}:{S+4*i+3}], v{5 if i & 1 else 2}, s[28:31], s48 offen offset:{(i>>1)<<i1}{kvf}")
    def issue(n, S, start=0):
        for i in range(start, 4): A(f"s_waitcnt vmcnt({W(n,i)})"); ld(S, i)
        step(SL.index(S))
    def dma4(n, j):
        for i in range(4):
            A(("s_mov_b32 s49, s54", "s_add_u32 s49, s54, s88", "s_add_u32 s49, s54, s89", "s_add_u32 s49, s49, s88")[i])
            A(("s_mov_b32 m0, s55", "s_add_u32 m0, s55, s91", "s_add_u32 m0, s55, s94", "s_add_u32 m0, m0, s91")[i])
            A(f"s_waitcnt vmcnt({W(n,i)})")
            A(f"buffer_load_dwordx4 v{DV}, s[40:43], s49 offen{wf} lds")
        A("s_add_u32 s54, s54, s90\ns_add_u32 s55, s55, s95"); step(j)
    def dmafin(tagl):
        A("s_lshl_b32 s94, s91, 1\ns_lshl_b32 s95, s91, 2")
        for k, (g, l) in enumerate(((88, 91), (89, 94), (90, 95))):
            src = rot[k] if rot else None
            if src is None: continue
            A(f"s_bitcmp1_b32 s26, {src}\ns_cbranch_scc0 L_rot{tagl}{k}")
            A(f"s_add_u32 s54, s54, s{g}\ns_sub_u32 s{g}, 0, s{g}\ns_add_u32 s55, s55, s{l}\ns_sub_u32 s{l}, 0, s{l}\nL_rot{tagl}{k}:")
    def setup():
        masks()
        A("v_mov_b32 v16, 0\nv_mov_b32 v17, 0\nv_mov_b32 v18, 0\nv_mov_b32 v19, 0")
        A(f"v_and_b32 v24, 15, v1\nv_lshlrev_b32 v24, 4, v24\nv_add_u32 v24, {QB}, v24")
        A(f"v_lshlrev_b32 v3, 4, v0\nv_add_u32 v3, {PART}, v3\nv_mov_b32 v4, {FLG}\nv_mov_b32 v6, 0")
        A("s_lshl_b32 s49, s26, 22\ns_add_u32 s32, s8, s49\ns_addc_u32 s33, s9, 0")
        A("s_cmp_lt_u32 s27, 2\ns_cselect_b32 s58, 0x33333333, 0\ns_cselect_b32 s61, 3, 9\ns_mov_b32 s59, s58\ns_mov_b32 s64, 0x00110011\ns_mov_b32 s65, 0x00110011")
        for j in range(1, 4): A(f"s_mov_b32 s{64+2*j}, {hex(0x11111111 << j)}\ns_mov_b32 s{65+2*j}, {hex(0x11111111 << j)}")
        srd(36, "s24", "s25", WS_USED)
        A("s_mov_b32 s51, 0")
        if even: A("s_mov_b32 s61, 9")
        if stamps:
            for i in range(8): A(f"s_mov_b64 s[{72+2*i}:{73+2*i}], 0")
    ldm(0)
    if M1: A('s_waitcnt vmcnt(0)')
    ldm(1)
    if prio: A("s_setprio 1")
    if not even: A("s_cmp_lt_u32 s27, 2\ns_cbranch_scc1 L_rolepro")
    for i in range(N0): ld(SL[0], i)
    if qflag: A("s_barrier")
    srd(40, "s12", "s13", 0); A(f"v_mov_b32 v{DV}, 0")
    setup()
    issue(NP0 or N, SL[0], N0); issue(NP1 or N, SL[1])
    A("s_branch L_pro2")
    A("L_rolepro:")
    if qflag: A("s_barrier")
    A(f"v_and_b32 v22, 7, v1\nv_lshrrev_b32 v23, 4, v1\nv_lshlrev_b32 v23, 1, v23\nv_xor_b32 v22, v22, v23\nv_lshlrev_b32 v{DV}, 4, v22")
    A("s_lshl_b32 s55, s3, 13\ns_movk_i32 s91, 0x400")
    A("s_cmp_eq_u32 s27, 1\ns_cbranch_scc1 L_ffnpro")
    srd(40, "s12", "s13", 0 if nodma else 4096 * 512 * 2)
    A(f"v_lshrrev_b32 v23, 3, v1\nv_lshl_add_u32 v{DV}, v23, 10, v{DV}")
    A("s_lshr_b32 s54, s26, 3\ns_lshl_b32 s54, s54, 20\ns_and_b32 s49, s26, 7\ns_lshl_b32 s49, s49, 7\ns_add_u32 s54, s54, s49\ns_lshl_b32 s49, s3, 16\ns_add_u32 s54, s54, s49")
    A("s_movk_i32 s88, 0x2000\ns_movk_i32 s89, 0x4000\ns_mov_b32 s90, 0x8000\ns_branch L_rolego")
    A("L_ffnpro:")
    srd(40, "s16", "s17", 0 if nodma else 512 * 1792 * 2)
    A("s_cmp_ge_u32 s26, 28\ns_cselect_b32 s92, 0x7ff00000, 0")
    A(f"v_lshrrev_b32 v23, 3, v1\nv_mul_u32_u24 v23, 3584, v23\nv_add3_u32 v{DV}, v{DV}, v23, s92")
    A(f"s_lshl_b32 s54, s26, 7\ns_mul_i32 s49, s3, {64*3584}\ns_add_u32 s54, s54, s49")
    A(f"s_mov_b32 s88, {8*3584}\ns_mov_b32 s89, {16*3584}\ns_mov_b32 s90, {32*3584}")
    A("L_rolego:")
    if dmalin: A(f"v_lshlrev_b32 v{DV}, 4, v1\ns_lshl_b32 s54, s26, 16\ns_lshl_b32 s49, s3, 13\ns_add_u32 s54, s54, s49\ns_movk_i32 s88, 0x400\ns_movk_i32 s89, 0x800\ns_movk_i32 s90, 0x1000")
    dmafin('a')
    A('s_mov_b32 s56, s54\ns_mov_b32 s57, s55')
    dma4(NP0 or NW, 0); setup(); dma4(NP1 or NW, 1)
    A("s_cmp_eq_u32 s27, 1\ns_cbranch_scc1 L_ffn2")
    A(f"s_add_u32 s54, s56, {0x200000 if dmalin else 0x80000}\ns_add_u32 s55, s57, 0x10000\ns_branch L_pro2")
    A("L_ffn2:")
    srd(40, "s18", "s19", 0 if nodma else 1792 * 512 * 2)
    A(f"v_lshl_add_u32 v{DV}, v1, 4, s92\ns_min_u32 s54, s26, 27\ns_lshl_b32 s54, s54, 16\ns_lshl_b32 s49, s3, 13\ns_add_u32 s54, s54, s49")
    A(f"s_mul_i32 s55, s3, {8*W2ST}\ns_add_u32 s55, s55, {W2OFF}\ns_movk_i32 s91, {W2ST}\ns_movk_i32 s88, 0x400\ns_movk_i32 s89, 0x800\ns_movk_i32 s90, 0x1000\ns_lshl_b32 s94, s91, 1\ns_lshl_b32 s95, s91, 2")
    A("L_pro2:")
    if qdel == 1: A("ds_write_b32 v4, v6 offset:4")
    if qdel == 2:
        for i in range(2): A(f"s_waitcnt vmcnt({W(N,i)})"); ld(SL[2], i)
        A("ds_write_b32 v4, v6 offset:4"); issue(N, SL[2], 2)
    else: issue(N, SL[2])
    if qdel == 3: A("ds_write_b32 v4, v6 offset:4")
    issue(N, SL[3])
    wstamp(6)
    if qflag:
        poll_head("L_qwait")
        A(f"ds_read_b32 v25, v4 offset:{TAGB-FLG}\nds_read_b128 v[8:11], v24\ns_waitcnt lgkmcnt(0)\nv_cmp_eq_u32 vcc, -1, v25\ns_cbranch_vccnz L_qwait\nL_qwaitgo:")
        if stamps: A("s_memrealtime s[86:87]")
    else:
        if not nobar: A("s_barrier")
        A("ds_read_b128 v[8:11], v24\ns_waitcnt lgkmcnt(0)")
    for n_ in range(4):
        for i in range(2): A(f"v_dot2_f32_bf16 v{24+i}, v{MS+4*i+n_}, v{8+n_}, {'0' if n_==0 else 'v%d'%(24+i)}")
    for qp in ("[1,0,3,2]", "[2,3,0,1]"):
        for i in range(2): A(f"v_add_f32_dpp v{24+i}, v{24+i}, v{24+i} quad_perm:{qp} {FULL}")
    A("v_add_f32_dpp v28, v24, v24 row_half_mirror row_mask:0xf bank_mask:0x5")
    A("v_add_f32_dpp v28, v25, v25 row_half_mirror row_mask:0xf bank_mask:0xa")
    A(f"v_add_f32_dpp v7, v28, v28 row_ror:8 {FULL}")
    def consumeK(S, j):
        for n in range(4):
            for i in range(4):
                A(f"v_dot2_f32_bf16 v{24+i}, v{S+4*i+n}, v{8+n}, {'0' if n==0 else 'v%d'%(24+i)}")
        for qp in ("[1,0,3,2]", "[2,3,0,1]"):
            for i in range(4): A(f"v_add_f32_dpp v{24+i}, v{24+i}, v{24+i} quad_perm:{qp} {FULL}")
        A("v_add_f32_dpp v28, v24, v24 row_half_mirror row_mask:0xf bank_mask:0x5")
        A("v_add_f32_dpp v29, v26, v26 row_half_mirror row_mask:0xf bank_mask:0x5")
        A("v_add_f32_dpp v28, v25, v25 row_half_mirror row_mask:0xf bank_mask:0xa")
        A("v_add_f32_dpp v29, v27, v27 row_half_mirror row_mask:0xf bank_mask:0xa")
        if j == 0: A("v_mov_b32 v20, v21\nv_mov_b32 v21, v22\nv_mov_b32 v22, v23")
        e = 23 if j == 0 else 30
        A(f"v_add_f32_dpp v{e}, v28, v28 row_ror:8 row_mask:0xf bank_mask:0x3")
        A(f"v_add_f32_dpp v{e}, v29, v29 row_ror:8 row_mask:0xf bank_mask:0xc")
        if j: A(f"v_cndmask_b32 v23, v23, v30, s[{64+2*j}:{65+2*j}]")
    def buildB(j):
        for i in range(4):
            for n in range(4): A(f"v_and_b32_dpp v{32+4*i+n}, v20, v{12+n} row_newbcast:{4*i+j} {FULL}")
    def mf(S, i): A(f"v_mfma_f32_16x16x32_bf16 v[16:19], v[{S+4*i}:{S+4*i+3}], v[{32+4*i}:{32+4*i+3}], v[16:19]")
    NK = N
    THR = []
    def tissue(n, j, sf, tick):
        A(f"s_waitcnt lgkmcnt(0)\nv_cmp_eq_u32 vcc, -1, v31\ns_cbranch_vccz L_thr{sf}{j}")
        issue(n, SL[j]); A(f"L_thrb{sf}{j}:"); THR.append((sf, j))
        if tick: A("s_mov_b64 exec, 1\nds_add_u32 v4, v121 offset:16\ns_mov_b64 exec, -1")
    A("v_mov_b32 v121, 1")
    A("L_kloop:")
    A("s_cmp_lg_u32 s51, 3\ns_cbranch_scc1 L_knosw")
    A("s_mov_b32 s28, s32\ns_mov_b32 s29, s33\ns_mov_b32 s48, s93")
    for i in range(2): A(f"s_waitcnt vmcnt({W(NM,i)})"); ldm(i)
    A("L_knosw:")
    for j in range(4):
        if ck: A("ds_read_b32 v31, v4 offset:12")
        consumeK(SL[j], j)
        if j < 2: A(f"s_cmp_eq_u32 s51, s61\ns_cbranch_scc1 L_kdma{j}")
        if ck: tissue(NK, j, "k", True)
        else:
            issue(NK, SL[j]); A(f"L_thrbk{j}:")
            if cv: A("s_mov_b64 exec, 1\nds_add_u32 v4, v121 offset:16\ns_mov_b64 exec, -1")
    A("s_add_u32 s51, s51, 1\ns_cmp_lt_u32 s51, 4\ns_cbranch_scc1 L_kloop")
    wstamp(0)
    R5 = (20, 21, 22, 23, 7)
    for c in (SCALE, LOG2E):
        A("v_cvt_pk_bf16_f32 v24, v20, v21\nv_cvt_pk_bf16_f32 v25, v22, v23\nv_cvt_pk_bf16_f32 v7, v7, v7")
        A("v_lshlrev_b32 v20, 16, v24\nv_and_b32 v21, 0xffff0000, v24\nv_lshlrev_b32 v22, 16, v25\nv_and_b32 v23, 0xffff0000, v25\nv_lshlrev_b32 v7, 16, v7")
        for n in R5: A(f"v_mul_f32 v{n}, {c}, v{n}")
    A("v_mov_b32 v26, 0xff800000\nv_cndmask_b32 v20, v20, v26, s[58:59]\nv_cndmask_b32 v7, v26, v7, s[64:65]")
    A("v_max3_f32 v24, v20, v21, v22\nv_max3_f32 v24, v24, v23, v7")
    for d in RED: A(f"v_max_f32_dpp v24, v24, v24 {d}")
    A("v_readlane_b32 s56, v24, 63")
    for n in R5: A(f"v_subrev_f32 v{n}, s56, v{n}")
    for n in R5: A(f"v_exp_f32 v{n}, v{n}")
    A("v_add_f32 v25, v20, v21\nv_add_f32 v26, v22, v23\nv_add_f32 v25, v25, v26\nv_add_f32 v25, v25, v7")
    for n in R5: A(f"v_cvt_pk_bf16_f32 v{n}, v{n}, v{n}")
    for d in RED: A(f"v_add_f32_dpp v25, v25, v25 {d}")
    for i in range(2):
        for n in range(4): A(f"v_and_b32_dpp v{32+4*i+n}, v7, v{12+n} row_newbcast:{4*i} {FULL}")
    for i in range(2): mf(MS, i)
    buildB(0)
    A(f"s_lshl_b32 s57, s3, 3\ns_add_u32 s57, s57, {MLB}\nv_mov_b32 v26, s57\nv_min_u32 v24, -2, v24\nv_min_u32 v25, -2, v25")
    setexec(1 << 63)
    A("ds_write_b64 v26, v[24:25]")
    setexec(-1)
    A("s_mov_b32 s51, 0")
    def vgroup(n, flag=False):
        for j in range(4):
            S = SL[j]
            if flag or cv: A("ds_read_b32 v31, v4 offset:12")
            for i in range(4): mf(S, i)
            if j == 3: A("v_mov_b32 v20, v21\nv_mov_b32 v21, v22\nv_mov_b32 v22, v23")
            if j == fj and flag: A("ds_write_b32 v4, v6")
            buildB((j + 1) & 3)
            if flag or cv: tissue(n, j, "v" if flag else "e", bool(cv))
            else: issue(n, S)
    A("L_vloop:")
    vgroup(NV or NK, True)
    same = NE == (NV or NK)
    A(f"s_add_u32 s51, s51, 1\ns_cmp_lt_u32 s51, {3 if same else 2}\ns_cbranch_scc1 L_vloop")
    if not same: vgroup(NE)
    for j in range(4):
        for i in range(4):
            left = 15 - (4 * j + i)
            if left < (max(NE) if isinstance(NE, list) else NE): A(f"s_waitcnt vmcnt({left})")
            mf(SL[j], i)
        if j < 3: buildB(j + 1)
    wstamp(1)
    A("s_cmp_eq_u32 s60, 1")
    A("ds_write_b128 v3, v[16:19]")
    A("s_waitcnt lgkmcnt(0)\ns_barrier")
    if not notail:
        A("s_cbranch_scc1 L_s2")
        A("s_cmp_eq_u32 s60, 2\ns_cbranch_scc1 L_s3")
    wflush()
    A("s_endpgm")
    for sf, j in THR:
        A(f"L_thr{sf}{j}:"); issue(thr, SL[j]); A(f"s_branch L_thrb{sf}{j}")
    for j in range(2):
        A(f"L_kdma{j}:"); dma4(NW, j); A(f"s_branch L_thrbk{j}")
    def trfields():
        A("v_lshrrev_b32 v22, 2, v1\nv_bfe_u32 v23, v1, 3, 2\nv_and_b32 v24, 3, v1\nv_lshlrev_b32 v24, 3, v24")
    A("L_s2:")
    wstamp(2)
    A("v_bfe_u32 v23, v1, 2, 2\nv_and_b32 v24, 3, v1\nv_lshlrev_b32 v24, 3, v24\nv_lshrrev_b32 v22, 4, v1\ns_lshl_b32 s48, s3, 14")
    A("v_lshl_add_u32 v25, v22, 11, v24\nv_lshl_add_u32 v25, v23, 8, v25\nv_add_u32 v25, s48, v25")
    for ct in range(4): A(f"v_xor_b32 v26, {ct}, v23\nv_lshl_add_u32 v{28+ct}, v26, 5, v25")
    BB = 48
    for t in range(4):
        for ct in range(4):
            for hf in range(2):
                r = BB + (ct * 4 + t) * 4 + hf * 2
                A(f"ds_read_b64_tr_b16 v[{r}:{r+1}], v{28+ct} offset:{(64*(t&1)+8*hf+(t>>1))*128}")
    def mkidx(r): A(f"v_mov_b32 v{r}, 0x4444\nv_mov_b32 v26, 0xeeee\nv_mov_b32_dpp v{r}, v26 quad_perm:[0,1,2,3] row_mask:0xf bank_mask:0xc")
    def sel2(D):
        A(f"v_permlane32_swap_b32 v{D}, v{D+8}\nv_permlane32_swap_b32 v{D+4}, v{D+12}\nv_add_f32 v{D+4}, v{D+4}, v{D+12}\nv_add_f32 v{D}, v{D}, v{D+8}")
        A(f"v_mov_b32_dpp v{D}, v{D+4} quad_perm:[0,1,2,3] row_mask:0xa bank_mask:0xf")
    mkidx(10)
    for n in range(16): A(f"v_mov_b32 v{32+n}, 0")
    A("s_and_b32 s49, s26, 0x18\ns_add_u32 s49, s49, s3")
    A("v_lshlrev_b32 v22, 4, v1")
    A(f"s_lshl_b32 s48, s49, 11\ns_add_u32 s48, s48, {P1O}")
    A(f"v_lshlrev_b32 v27, 2, v0\nv_add_u32 v27, {YB}, v27")
    for n in range(4): A(f"v_and_b32 v{12+n}, 0x3f803f80, v{12+n}")
    DD, PA, AT = 32, 112, 120
    wstamp(3)
    A("s_mov_b32 s51, 0")
    if '2' in warm: A("s_mov_b32 s51, 1\ns_branch L_s2pollgo\nL_s2real:\ns_mov_b32 s51, 0")
    poll_head("L_s2poll")
    for i in range(2): A(f"buffer_load_dwordx4 v[{PA+4*i}:{PA+4*i+3}], v22, s[36:39], s48 offen offset:{i*1024} sc1")
    A("s_waitcnt vmcnt(0)")
    chk_sent(range(PA, PA + 8), 24, 25)
    A("s_mov_b64 exec, vcc\ns_cbranch_vccnz L_s2poll\nL_s2pollgo:")
    setexec(-1)
    wstamp(4)
    A(f"v_mfma_f32_16x16x32_bf16 v[16:19], v[{PA}:{PA+3}], v[12:15], 0\nv_mfma_f32_16x16x32_bf16 v[16:19], v[{PA+4}:{PA+7}], v[12:15], v[16:19]")
    A("s_waitcnt lgkmcnt(0)")
    A("v_cvt_pk_bf16_f32 v16, v16, v17\nv_cvt_pk_bf16_f32 v17, v18, v19")
    def mv(T, n, hi): return f"v_mov_b32_dpp v{AT+4*T+n}, v{16+hi} row_newbcast:{4*T+n} row_mask:0xf bank_mask:{'0xc' if hi else '0x3'}"
    for hi in range(2):
        for n in range(4): A(mv(0, n, hi))
    for T in range(2):
        for ct in range(4):
            b = BB + (ct * 4 + 2 * T) * 4
            if T == 0: A(mv(1, ct, 0)); A(mv(1, ct, 1))
            A(f"v_smfmac_f32_16x16x64_bf16 v[{DD+4*ct}:{DD+4*ct+3}], v[{AT+4*T}:{AT+4*T+3}], v[{b}:{b+7}], v10")
    sel2(DD)
    A(f"ds_write_b32 v27, v{DD}")
    if '2' in warm: A("s_cmp_lg_u32 s51, 0\ns_cbranch_scc1 L_s2real")
    if 's' in warm: A("s_cmp_eq_u32 s3, 8\ns_cbranch_scc1 L_s2back")
    A("s_waitcnt lgkmcnt(0)")
    wstamp(5)
    A("s_barrier")
    wflush()
    A("s_endpgm")
    A("L_s3:")
    wstamp(2)
    B1, B2 = 48, 112
    PPB, STB = YB, YB + 2048
    srd(44, "s4", "s5", 1024)
    A(f"ds_read_b32 v15, v4 offset:{TAGB-FLG}\nds_read_b32 v90, v4 offset:{TAGB-FLG+4}")
    A("v_lshrrev_b32 v25, 4, v1"); rowperm(26, 25, 27)
    A("v_and_b32 v27, 15, v1\nv_lshl_add_u32 v26, v27, 2, v26\ns_lshl_b32 s48, s3, 6\nv_add_u32 v28, s48, v26")
    A(f"v_lshlrev_b32 v28, 1, v28\nbuffer_load_ushort v6, v28, s[44:47], 0 offen\nv_add_u32 v8, {HB}, v28")
    A(f"v_lshlrev_b32 v7, 11, v25\nv_lshl_add_u32 v7, v27, 4, v7\ns_lshl_b32 s50, s3, 8\ns_add_u32 s50, s50, {0 if ydual else YOFF}")
    A(f"v_lshlrev_b32 v10, 4, v1\nv_add_u32 v10, {PPB}, v10")
    A(f"s_lshr_b32 s48, s3, 2\ns_lshl_b32 s48, s48, 10\ns_and_b32 s49, s3, 3\ns_lshl_b32 s49, s49, 2\ns_add_u32 s48, s48, s49\nv_add_u32 v9, s48, v10")
    A(f"v_and_b32 v11, 7, v1\nv_lshlrev_b32 v11, 3, v11\nv_add_u32 v11, {STB}, v11\ns_lshl_b32 s48, s3, 3\ns_add_u32 s48, s48, {STB}\nv_mov_b32 v12, s48")
    A(f"v_lshlrev_b32 v13, 2, v1\ns_lshl_b32 s49, s26, 11\ns_lshl_b32 s48, s3, 8\ns_add_u32 s49, s49, s48\ns_add_u32 s49, s49, {ZOFF}")
    A("v_bfe_u32 v22, v1, 2, 2\nv_and_b32 v24, 3, v1\nv_lshlrev_b32 v24, 3, v24")
    A(f"v_lshl_add_u32 v23, v25, 3, v22\nv_mul_u32_u24 v23, {W2ST}, v23\nv_add_u32 v23, v23, v24\ns_lshl_b32 s48, s3, 7\ns_add_u32 s48, s48, {W2OFF}\nv_add_u32 v23, s48, v23")
    for u in range(4):
        for t in range(2):
            for hf in range(2):
                r = B2 + (u * 2 + t) * 4 + hf * 2
                A(f"ds_read_b64_tr_b16 v[{r}:{r+1}], v23 offset:{(t*32+hf*4)*W2ST+u*32}")
    A("v_lshrrev_b32 v26, 5, v1\nv_lshlrev_b32 v26, 1, v26\nv_lshl_add_u32 v23, v22, 2, v26\nv_bfe_u32 v29, v23, 1, 2\nv_and_b32 v26, 1, v25\nv_lshl_add_u32 v23, v26, 5, v23")
    A("v_lshl_add_u32 v23, v23, 7, v24\ns_lshl_b32 s48, s3, 13\nv_add_u32 v23, s48, v23")
    for ct in range(4):
        A(f"v_xor_b32 v30, {ct}, v29\nv_lshl_add_u32 v30, v30, 5, v23")
        for t in range(2):
            for hf in range(2):
                r = B1 + (ct * 2 + t) * 4 + hf * 2
                A(f"ds_read_b64_tr_b16 v[{r}:{r+1}], v30 offset:{(t+hf*16)*128}")
    mkidx(91)
    def zero():
        for n in range(16): A(f"v_mov_b32 v{32+n}, 0\nv_mov_b32 v{96+n}, 0")
    zero()
    def gemv(Breg, D):
        for u in range(4):
            b = Breg + u * 8
            yield f"v_smfmac_f32_16x16x64_bf16 v[{D+4*u}:{D+3+4*u}], v[24:27], v[{b}:{b+7}], v91"
    def sel(): sel2(32)
    def exch():
        A("ds_write_b32 v9, v32\ns_waitcnt lgkmcnt(0)\ns_barrier")
    def sum8(d):
        A("v_add_f32 v80, v80, v81\nv_add_f32 v82, v82, v83\nv_add_f32 v84, v84, v85\nv_add_f32 v86, v86, v87")
        A(f"v_add_f32 v80, v80, v82\nv_add_f32 v84, v84, v86\nv_add_f32 v{d}, v80, v84")
    def pack(src):
        A(f"v_mov_b32_dpp v17, v{src} quad_perm:[1,0,3,2] {FULL}\nv_cvt_pk_bf16_f32 v17, v{src}, v17")
        for hi in range(2):
            for n in range(4): A(f"v_mov_b32_dpp v{24+n}, v17 row_newbcast:{4*n+2*hi} row_mask:0xf bank_mask:{'0xc' if hi else '0x3'}")
    A(f"v_mov_b32 v16, 1.0\nv_mov_b32 v89, v13\nv_mov_b32 v13, 0x7ff00000\ns_mov_b32 s51, 1\ns_waitcnt vmcnt(0) lgkmcnt(0)\nv_lshlrev_b32 v6, 16, v6\nv_readfirstlane_b32 s52, v90\ns_branch L_s3pack")
    A("L_s3real:\nv_mov_b32 v14, v88\nv_mov_b32 v13, v89\ns_mov_b32 s51, 0")
    zero()
    wstamp(3)
    A("s_barrier")
    if ydual: A("ds_read_b32 v24, v4 offset:8\ns_waitcnt lgkmcnt(0)\nv_add_u32 v7, v7, v24")
    poll_head("L_s3poll")
    A("buffer_load_dwordx4 v[20:23], v7, s[36:39], s50 offen sc1\ns_waitcnt vmcnt(0)")
    chk_tag(range(20, 24), 15, 24)
    A("s_mov_b64 exec, vcc\ns_cbranch_vccnz L_s3poll\nL_s3pollgo:")
    setexec(-1)
    wstamp(4)
    tred(20, 16)
    rbf(16); A("v_add_f32 v16, v16, v6\nL_s3pack:")
    A(f"v_mov_b32_dpp v17, v16 quad_perm:[1,0,3,2] {FULL}\nv_cvt_pk_bf16_f32 v17, v16, v17\nv_lshlrev_b32 v18, 16, v17\nv_mul_f32 v19, v18, v18")
    mvs = [f"v_mov_b32_dpp v{24+n}, v17 row_newbcast:{4*n+2*hi} row_mask:0xf bank_mask:{'0xc' if hi else '0x3'}" for hi in range(2) for n in range(4)]
    red = [f"v_add_f32_dpp v18, v18, v18 {d}\nv_add_f32_dpp v19, v19, v19 {d}" for d in RED]
    for x in mvs: A(x)
    A(red[0])
    for k, ins in enumerate(gemv(B1, 32)): A(ins); A(red[1 + k])
    A("ds_write_b16 v8, v17"); A(red[5])
    setexec(1 << 63); A("ds_write_b64 v12, v[18:19]"); setexec(-1)
    sel(); exch()
    A("ds_read_b64 v[18:19], v11\nds_read_b128 v[80:83], v10\nds_read_b128 v[84:87], v10 offset:1024\ns_waitcnt lgkmcnt(2)")
    A(red[0]); A("s_waitcnt lgkmcnt(1)\nv_add_f32 v80, v80, v81"); A(red[1]); A("v_add_f32 v82, v82, v83"); A(red[2])
    A(f"v_mul_f32 v18, {f32(1/512)}, v18\nv_mul_f32 v19, {f32(1/512)}, v19\nv_fma_f32 v19, -v18, v18, v19\nv_max_f32 v19, 0, v19")
    A(f"v_cvt_pk_bf16_f32 v18, v19, v18\nv_lshlrev_b32 v19, 16, v18\nv_add_f32 v19, {f32(1e-5)}, v19"); rbf(19)
    A("v_sqrt_f32 v19, v19\ns_waitcnt lgkmcnt(0)\nv_add_f32 v84, v84, v85\nv_add_f32 v86, v86, v87"); rbf(19)
    A("v_rcp_f32 v19, v19\nv_add_f32 v80, v80, v82\nv_add_f32 v84, v84, v86\nv_and_b32 v18, 0xffff0000, v18\nv_add_f32 v88, v80, v84")
    A("v_fma_f32 v20, -v18, v14, v88\nv_mul_f32 v20, v20, v19"); rbf(20)
    A(f"v_mul_f32 v21, {f32(-1.4426950408889634)}, v20\nv_exp_f32 v21, v21\nv_add_f32 v21, 1.0, v21\nv_rcp_f32 v21, v21\nv_mul_f32 v20, v20, v21")
    pack(20)
    for ins in gemv(B2, 96): A(ins)
    A("s_cmp_eq_u32 s52, 0")
    sel2(96); puttag(96, 96, 15)
    A("s_cbranch_scc1 L_zfar\nbuffer_store_dword v96, v13, s[36:39], s49 offen" + {3: " nt", 4: " sc0"}.get(wb, "") + "\ns_branch L_zdone")
    A("L_zfar:\nbuffer_store_dword v96, v13, s[36:39], s49 offen sc1\nL_zdone:")
    setexec(-1)
    A("s_cmp_lg_u32 s51, 0\ns_cbranch_scc1 L_s3real")
    if wb == 1: A("s_cmp_lg_u32 s3, 0\ns_cbranch_scc1 L_end\ns_cmp_lg_u32 s26, 20\ns_cbranch_scc1 L_end\ns_waitcnt vmcnt(0)\nbuffer_wbl2 sc1")
    if wb == 2: A("s_waitcnt vmcnt(0)\nbuffer_store_dword v96, v13, s[36:39], s49 offen nt")
    wstamp(5)
    wflush()
    A("s_endpgm")
    A("L_service:")
    if stamps:
        for i in range(1, 12): A(f"s_mov_b64 s[{64+2*i}:{65+2*i}], 0")
    stamp(0)
    A("v_lshrrev_b32 v2, 4, v1\nv_and_b32 v3, 15, v1")
    A("v_lshlrev_b32 v4, 17, v2\nv_lshl_add_u32 v4, v3, 4, v4")
    A("v_lshlrev_b32 v5, 4, v1\nv_mov_b32 v6, 0\nv_lshlrev_b32 v7, 1, v1")
    A("s_lshl_b32 s48, s27, 19\ns_lshl_b32 s49, s26, 8\ns_add_u32 s48, s48, s49\ns_lshl_b32 s50, s27, 7")
    A(f"s_mov_b32 s42, {0 if nowq else 512*4096*2}\ns_mov_b32 s43, 0x20000\ns_mov_b32 s46, 1024\ns_mov_b32 s47, 0x20000\ns_mov_b32 s38, {WS_USED}\ns_mov_b32 s39, 0x20000")
    A("s_waitcnt lgkmcnt(0)")
    A("s_mov_b32 s44, s4\ns_mov_b32 s45, s5\ns_mov_b32 s40, s10\ns_mov_b32 s41, s11")
    A("buffer_load_dwordx4 v[8:11], v5, s[44:47], 0 offen\nbuffer_load_ushort v16, v7, s[44:47], s50 offen")
    for i in range(16):
        A(f"buffer_load_dwordx4 v[{48+4*i}:{51+4*i}], v4, s[40:43], s48 offen{wf}")
        if i < 15: A("s_add_u32 s48, s48, 0x2000")
    A("s_mov_b32 s36, s24\ns_mov_b32 s37, s25")
    A("buffer_load_dword v17, v6, s[36:39], 0 offen sc1")
    A("s_load_dwordx2 s[20:21], s[0:1], 64")
    A(f"v_mov_b32 v28, -1\ns_lshl_b32 s48, s2, 8\ns_add_u32 s48, s48, {P1O}")
    if norst or rstlate: pass
    elif rst4:
        A("v_mov_b32 v29, -1\nv_mov_b32 v30, -1\nv_mov_b32 v31, -1")
        setexec(0xffff); A("buffer_store_dwordx4 v[28:31], v5, s[36:39], s48 offen sc1"); setexec(-1)
    else: A("v_lshlrev_b32 v29, 2, v1\nbuffer_store_dword v28, v29, s[36:39], s48 offen sc1")
    A(f"v_and_b32 v22, 31, v1\nv_lshlrev_b32 v22, 2, v22\nv_add_u32 v22, {MLB}, v22\nds_write_b32 v22, v28\nv_mov_b32 v47, {FLG}")
    if qflag: A("s_waitcnt lgkmcnt(0)\ns_barrier")
    if noq: A(f"s_waitcnt vmcnt(0) lgkmcnt(0)\nv_add_u32 v17, 1, v17\nv_and_b32 v15, 0xff, v17\nds_write_b32 v47, v15 offset:{TAGB-FLG}\ns_branch L_qskip")
    masks()
    A("s_mov_b32 s48, 0x3f803f80")
    A("s_waitcnt vmcnt(17)")
    A("v_dot2_f32_bf16 v22, v8, s48, 0\nv_dot2_f32_bf16 v23, v8, v8, 0")
    for n in range(1, 4): A(f"v_dot2_f32_bf16 v22, v{8+n}, s48, v22\nv_dot2_f32_bf16 v23, v{8+n}, v{8+n}, v23")
    for d in RED: A(f"v_add_f32_dpp v22, v22, v22 {d}\nv_add_f32_dpp v23, v23, v23 {d}")
    A(f"v_readlane_b32 s56, v22, 63\nv_readlane_b32 s57, v23, 63\nv_mov_b32 v24, {f32(1/512)}\nv_lshlrev_b32 v16, 16, v16")
    A("v_mul_f32 v22, s56, v24\nv_mul_f32 v23, s57, v24\nv_fma_f32 v23, -v22, v22, v23\nv_max_f32 v23, 0, v23")
    A("v_cvt_pk_bf16_f32 v22, v23, v22\nv_lshlrev_b32 v23, 16, v22\nv_and_b32 v22, 0xffff0000, v22")
    A(f"v_add_f32 v23, {f32(1e-5)}, v23"); rbf(23); A("v_sqrt_f32 v23, v23\nv_sub_f32 v16, v16, v22"); rbf(23); rbf(16)
    A("v_rcp_f32 v23, v23\nv_mul_f32 v16, v16, v23\nv_cvt_pk_bf16_f32 v16, v16, v16")
    for i in range(16):
        b = 32 + 4 * (i % 3)
        for n in range(4): A(f"v_and_b32_dpp v{b+n}, v16, v{12+n} row_newbcast:{i} {FULL}")
        A(f"s_waitcnt vmcnt({16-i})")
        A(f"v_mfma_f32_16x16x32_bf16 v[20:23], v[{48+4*i}:{51+4*i}], v[{b}:{b+3}], {'0' if i==0 else 'v[20:23]'}")
    A("v_lshlrev_b32 v18, 7, v2\nv_lshl_add_u32 v18, v3, 4, v18")
    A(f"s_lshl_b32 s48, s2, 9\ns_add_u32 s48, s48, {QP}\ns_lshl_b32 s49, s26, 12\ns_add_u32 s49, s49, {QP}")
    A("s_waitcnt vmcnt(0)\nv_add_u32 v17, 1, v17\nv_and_b32 v15, 0xff, v17")
    stamp(1)
    for n in range(4): puttag(20 + n, 20 + n, 17)
    setexec(0x00ff00ff00ff00ff)
    A("buffer_store_dwordx4 v[20:23], v18, s[36:39], s48 offen sc1")
    A("s_getreg_b32 s55, hwreg(HW_REG_XCC_ID, 0, 4)\ns_cmp_lg_u32 s60, 2\ns_cbranch_scc1 L_noxc")
    setexec(1)
    A(f"v_mov_b32 v16, s55\ns_lshl_b32 s48, s26, 3\ns_add_u32 s48, s48, {XCO}\nbuffer_store_dwordx2 v[16:17], v6, s[36:39], s48 offen sc1\nL_noxc:")
    setexec(-1)
    if rstlate == 1: A(f"v_mov_b32 v28, -1\nv_mov_b32 v29, -1\nv_mov_b32 v30, -1\nv_mov_b32 v31, -1\ns_lshl_b32 s48, s2, 8\ns_add_u32 s48, s48, {P1O}"); setexec(0xffff); A("buffer_store_dwordx4 v[28:31], v5, s[36:39], s48 offen sc1"); setexec(-1)
    A(f"v_bfe_u32 v19, v1, 3, 2\nv_lshlrev_b32 v19, 6, v19\nv_lshrrev_b32 v24, 5, v1\nv_lshl_add_u32 v19, v24, 4, v19\nv_and_b32 v24, 7, v1\nv_lshl_add_u32 v19, v24, 1, v19\nv_add_u32 v19, {QB}, v19")
    def qissue(b_):
        for i in range(4): A(f"buffer_load_dwordx4 v[{b_+4*i}:{b_+3+4*i}], v5, s[36:39], s49 offen offset:{i*1024} sc1")
    def sum16(b_):
        for v in range(4): A(f"v_add_f32 v{32+v}, v{b_+v}, v{b_+4+v}\nv_add_f32 v{40+v}, v{b_+8+v}, v{b_+12+v}")
    if nogat: A("s_branch L_qpolldone")
    if qack: A("s_waitcnt vmcnt(0)")
    if qdel:
        poll_head("L_qdel")
        A("ds_read_b32 v24, v47 offset:4\ns_waitcnt lgkmcnt(0)\nv_cmp_eq_u32 vcc, -1, v24\ns_cbranch_vccnz L_qdel\nL_qdelgo:")
    if qsel:
        for i in range(4): A(f"s_mov_b64 s[{88+2*i}:{89+2*i}], -1")
        poll_head("L_qpoll")
        for i in range(4):
            A(f"s_mov_b64 exec, s[{88+2*i}:{89+2*i}]\ns_cbranch_execz L_qi{i}")
            A(f"buffer_load_dwordx4 v[{48+4*i}:{51+4*i}], v5, s[36:39], s49 offen offset:{i*1024} sc1{' nt' if qnt else ''}\nL_qi{i}:")
        A("s_waitcnt vmcnt(0)")
        for i in range(4):
            A(f"s_mov_b64 exec, s[{88+2*i}:{89+2*i}]")
            chk_tag(range(48 + 4 * i, 52 + 4 * i), 15, 24)
            A(f"s_mov_b64 s[{88+2*i}:{89+2*i}], vcc")
        A("s_or_b64 s[50:51], s[88:89], s[90:91]\ns_or_b64 s[52:53], s[92:93], s[94:95]\ns_or_b64 s[50:51], s[50:51], s[52:53]\ns_cbranch_scc1 L_qpoll\nL_qpollgo:")
        setexec(-1); sum16(48); A("L_qpolldone:")
    else:
        ppoll("L_qpoll", [48, 64, 80][:PQ], 4, qissue, lambda b_: chk_tag(range(b_, b_ + 16), 15, 24), sum16)
    for v in range(4): A(f"v_add_f32 v{32+v}, v{32+v}, v{40+v}")
    A("v_permlane32_swap_b32 v32, v33\nv_permlane32_swap_b32 v34, v35\nv_add_f32 v32, v32, v33\nv_add_f32 v34, v34, v35\nv_cvt_pk_bf16_f32 v32, v32, v34")
    A("ds_write_b16 v19, v32\nds_write_b16_d16_hi v19, v32 offset:32")
    A(f"ds_write_b32 v47, v15 offset:{TAGB-FLG}\ns_waitcnt lgkmcnt(0)")
    A("L_qskip:")
    stamp(2)
    if not nobar and not qflag: A("s_barrier")
    stamp(11)
    if rstlate == 2: A(f"v_mov_b32 v28, -1\nv_mov_b32 v29, -1\nv_mov_b32 v30, -1\nv_mov_b32 v31, -1\ns_lshl_b32 s48, s2, 8\ns_add_u32 s48, s48, {P1O}"); setexec(0xffff); A("buffer_store_dwordx4 v[28:31], v5, s[36:39], s48 offen sc1"); setexec(-1)
    if noq: A("s_branch L_tagpollgo")
    A("s_cmp_lg_u32 s60, 1\ns_cbranch_scc1 L_tagpollgo")
    A(f"s_lshr_b32 s48, s26, 3\ns_lshl_b32 s48, s48, 15\ns_add_u32 s48, s48, {QP}\nv_lshlrev_b32 v22, 9, v1")
    if not rstlate:
        poll_head("L_tagpoll")
        A("buffer_load_dwordx4 v[32:35], v22, s[36:39], s48 offen sc1\ns_waitcnt vmcnt(0)")
        chk_tag(range(32, 36), 15, 24)
        A("s_cbranch_vccnz L_tagpoll")
    if 's' in warm:
        A(f"v_mov_b32 v11, v17\nv_lshlrev_b32 v27, 2, v1\nv_add_u32 v27, {YB}, v27\ns_branch L_s2pollgo\nL_s2back:\nv_mov_b32 v17, v11\nv_mov_b32 v47, {FLG}")
    A("L_tagpollgo:")
    HS, MSH = [(128, 4), (4352, 4), (1024, 7), (4352, 9)][mlmode]
    def waitprog(lab, val):
        poll_head(lab)
        A(f"ds_read_b32 v23, v47 offset:16\ns_waitcnt lgkmcnt(0)\nv_cmp_gt_i32 vcc, {val-1}, v23\ns_cbranch_vccnz {lab}\n{lab}go:")
    def tpoll(lab):
        A("v_mov_b32 v41, -1")
        setexec(0xff)
        poll_head(lab)
        A("buffer_load_dwordx2 v[42:43], v44, s[36:39], s49 offen sc1\ns_waitcnt vmcnt(0)\nv_cmp_ne_u32 vcc, v43, v17")
        A(f"s_bcnt1_i32_b64 s50, vcc\ns_cmp_lt_u32 s50, {thrmin}\ns_cbranch_scc1 {lab}go\ns_mov_b64 exec, vcc\nds_write_b32 v47, v6 offset:12\ns_branch {lab}\n{lab}go:")
        setexec(-1)
        A("ds_write_b32 v47, v41 offset:12")
    def checkpoint(k, blk):
        waitprog(f"L_ca{k}", 8 * blk)
        A(f"s_mul_i32 s49, s26, {HS}\ns_add_u32 s49, s49, {0x100000 + k * 0x24000}\ns_lshl_b32 s50, s27, {MSH}\ns_add_u32 s50, s49, s50")
        A("v_mov_b32 v40, v17\nv_mov_b32 v41, v17\nv_mov_b32 v42, v17\nv_mov_b32 v43, v17")
        setexec(0xff); A("buffer_store_dwordx4 v[40:43], v5, s[36:39], s50 offen sc1"); setexec(-1)
        waitprog(f"L_cb{k}", 8 * blk + CD)
        A("s_waitcnt vmcnt(0)")
        tpoll(f"L_ct{k}")
    A(f"v_and_b32 v45, 7, v1\nv_lshlrev_b32 v44, {MSH}, v45\nv_lshlrev_b32 v45, 4, v45")
    for k, blk in enumerate(ck): checkpoint(k, blk)
    A(f"v_lshrrev_b32 v22, 3, v3\nv_lshlrev_b32 v46, 5, v22\nv_add_u32 v46, {MLB}, v46")
    if noml: A("v_and_b32 v45, 7, v1\nv_lshlrev_b32 v45, 4, v45\ns_branch L_hpollgo")
    poll_head("L_mlpoll")
    if slp: A(f"s_sleep {slp}")
    A("ds_read_b128 v[24:27], v46\nds_read_b128 v[28:31], v46 offset:16\ns_waitcnt lgkmcnt(0)")
    chk_sent(range(24, 32), 40, 41)
    A("s_cbranch_vccnz L_mlpoll\nL_mlpollgo:")
    A(f"v_max3_f32 v32, v24, v26, v28\nv_max_f32 v32, v32, v30\nv_max_f32_dpp v32, v32, v32 row_ror:8 {FULL}")
    for u in range(4): A(f"v_sub_f32 v{40+u}, v{24+2*u}, v32")
    for u in range(4): A(f"v_exp_f32 v{40+u}, v{40+u}")
    A("v_mul_f32 v34, v40, v25")
    for u in range(1, 4): A(f"v_fmac_f32 v34, v{40+u}, v{25+2*u}")
    A(f"v_add_f32_dpp v34, v34, v34 row_ror:8 {FULL}\nv_mov_b32 v33, v17\nv_mov_b32 v35, v17")
    HS, MSH = [(128, 4), (4352, 4), (1024, 7), (4352, 9)][mlmode]
    A(f"s_mul_i32 s49, s26, {HS}\ns_add_u32 s49, s49, {P1ML}\ns_lshl_b32 s50, s27, {MSH}\ns_add_u32 s50, s49, s50")
    if rstlate: A("s_waitcnt vmcnt(0)")
    setexec(1 if mlmode < 2 else 0xff)
    A(f"buffer_store_dwordx4 v[32:35], v{6 if mlmode < 2 else 5}, s[36:39], s50 offen sc1")
    setexec(-1)
    A(f"v_and_b32 v45, 7, v1\nv_lshlrev_b32 v44, {MSH}, v45\nv_lshlrev_b32 v45, 4, v45")
    poll_head("L_fpoll")
    if slp: A(f"s_sleep {slp}")
    A("ds_read_b32 v23, v47\ns_waitcnt lgkmcnt(0)\nv_cmp_eq_u32 vcc, -1, v23\ns_cbranch_vccnz L_fpoll\nL_fpollgo:")
    A("s_waitcnt vmcnt(0)"); tpoll("L_tpoll")
    A(f"s_cmp_lg_u32 s60, 2\ns_cbranch_scc1 L_hpoll\nv_min_u32 v40, 27, v1\nv_lshlrev_b32 v40, 3, v40\ns_movk_i32 s50, {XCO}")
    poll_head("L_xpoll")
    A("buffer_load_dwordx2 v[36:37], v40, s[36:39], s50 offen sc1\ns_waitcnt vmcnt(0)\nv_cmp_ne_u32 vcc, v37, v17\ns_cbranch_vccnz L_xpoll\nL_xpollgo:")
    A(f"v_cmp_ne_u32 vcc, s55, v36\ns_cmp_eq_u64 vcc, 0\ns_cselect_b32 s50, {0 if forcefar else 1}, 0\nv_mov_b32 v36, s50\nds_write_b32 v47, v36 offset:{TAGB-FLG+4}")
    poll_head("L_hpoll")
    A("buffer_load_dwordx4 v[36:39], v44, s[36:39], s49 offen sc1\ns_waitcnt vmcnt(0)")
    A("v_bitop3_b32 v40, v37, v39, v17 bitop3:0x7e\nv_cmp_ne_u32 vcc, 0, v40\ns_cbranch_vccnz L_hpoll\nL_hpollgo:")
    A("v_mov_b32 v20, v36")
    for d in RED[:3]: A(f"v_max_f32_dpp v20, v20, v20 {d}")
    A("v_sub_f32 v36, v36, v20\nv_exp_f32 v36, v36\nv_mul_f32 v21, v36, v38")
    for d in RED[:3]: A(f"v_add_f32_dpp v21, v21, v21 {d}")
    A("v_rcp_f32 v21, v21")
    for u in range(4): A(f"v_sub_f32 v{24+u}, v{24+2*u}, v20")
    for u in range(4): A(f"v_exp_f32 v{24+u}, v{24+u}")
    for u in range(4): A(f"v_mul_f32 v{24+u}, v{24+u}, v21")
    if rstlate:
        A(f"s_cmp_lg_u32 s60, 1\ns_cbranch_scc1 L_t2pollgo\nv_lshrrev_b32 v40, 3, v1\nv_mul_u32_u24 v40, {HS}, v40\nv_add_u32 v40, v40, v44\ns_and_b32 s50, s26, 0x18\ns_mul_i32 s50, s50, {HS}\ns_add_u32 s50, s50, {P1ML}")
        poll_head("L_t2poll")
        A("buffer_load_dwordx2 v[36:37], v40, s[36:39], s50 offen sc1\ns_waitcnt vmcnt(0)\nv_cmp_ne_u32 vcc, v37, v17\ns_cbranch_vccnz L_t2poll\nL_t2pollgo:")
    for k, blk in enumerate(cv): checkpoint(len(ck) + k, blk)
    stamp(3)
    A(f"v_lshlrev_b32 v18, 12, v22\nv_lshl_add_u32 v18, v2, 8, v18\nv_add_u32 v18, v18, v45\nv_add_u32 v18, {PART}, v18")
    A(f"v_lshlrev_b32 v19, 6, v2\nv_lshrrev_b32 v23, 1, v45\nv_add_u32 v19, v19, v23\ns_lshl_b32 s48, s2, 8\ns_add_u32 s48, s48, {P1O}")
    if '1' in warm: A("v_mov_b32 v13, v19\nv_mov_b32 v19, 0x7ff00000\ns_mov_b32 s54, 1\ns_branch L_s1body\nL_s1real:\nv_mov_b32 v19, v13\ns_mov_b32 s54, 0")
    if prio: A("s_setprio 3")
    A("s_waitcnt vmcnt(0) lgkmcnt(0)\ns_barrier\nL_s1body:")
    for u in range(4): A(f"ds_read_b128 v[{32+4*u}:{35+4*u}], v18 offset:{u*1024}")
    for u in range(4):
        A(f"s_waitcnt lgkmcnt({3-u})")
        if u == 3: stamp(4)
        for v in range(4):
            A(f"v_mul_f32 v{32+v}, v{32+v}, v24" if u == 0 else f"v_fmac_f32 v{32+v}, v{32+4*u+v}, v{24+u}")
    for v in range(4): A(f"v_add_f32_dpp v{32+v}, v{32+v}, v{32+v} row_ror:8 {FULL}")
    A("v_cvt_pk_bf16_f32 v32, v32, v33\nv_cvt_pk_bf16_f32 v33, v34, v35")
    if p14:
        A(f"v_min_u32 v32, -2, v32\nv_min_u32 v33, -2, v33\nv_mov_b32_dpp v34, v32 quad_perm:[1,0,3,2] {FULL}\nv_mov_b32_dpp v35, v33 quad_perm:[1,0,3,2] {FULL}")
        setexec(0x0055005500550055)
        A("buffer_store_dwordx4 v[32:35], v19, s[36:39], s48 offen sc1")
    else:
        setexec(0x00ff00ff00ff00ff)
        A("v_min_u32 v32, -2, v32\nv_min_u32 v33, -2, v33")
        A("buffer_store_dwordx2 v[32:33], v19, s[36:39], s48 offen sc1")
    setexec(-1)
    if '1' in warm: A("s_cmp_lg_u32 s54, 0\ns_cbranch_scc1 L_s1real")
    stamp(5)
    if notail: A("s_cmp_lg_u32 s2, 1\ns_cbranch_scc1 L_svend\ns_branch L_epoch")
    A("s_cmp_eq_u32 s60, 0\ns_cbranch_scc1 L_svend\ns_cmp_eq_u32 s60, 2\ns_cbranch_scc1 L_svffn")
    A(f"v_lshlrev_b32 v18, 9, v2\nv_lshl_add_u32 v18, v3, 4, v18\nv_add_u32 v18, {YB}, v18")
    rowperm(19, 2, 22); A("v_lshl_add_u32 v19, v3, 2, v19\nv_lshlrev_b32 v19, 2, v19")
    A(f"s_lshl_b32 s48, s26, 8\ns_add_u32 s48, s48, {YOFF}\ns_add_u32 s49, s48, 0x2000")
    if 'y' in warm: A("v_mov_b32 v13, v19\nv_mov_b32 v19, 0x7ff00000\ns_mov_b32 s54, 1\ns_branch L_yfbody\nL_yfreal:\nv_mov_b32 v19, v13\ns_mov_b32 s54, 0")
    A("s_barrier\nL_yfbody:")
    A("ds_read_b128 v[24:27], v18\nds_read_b128 v[28:31], v18 offset:256\ns_waitcnt lgkmcnt(0)")
    stamp(6)
    for v in range(4): A(f"v_add_f32 v{24+v}, v{24+v}, v{28+v}")
    tred(24); puttag(24, 24, 17)
    A("buffer_store_dword v24, v19, s[36:39], s48 offen sc1")
    if ydual: A("buffer_store_dword v24, v19, s[36:39], s49 offen sc1")
    if 'y' in warm: A("s_cmp_lg_u32 s54, 0\ns_cbranch_scc1 L_yfreal")
    stamp(7)
    A("s_branch L_svend")
    A("L_svffn:")
    srd(44, "s20", "s21", 1024)
    rowperm(22, 2, 23)
    A("v_and_b32 v23, 7, v1\nv_lshl_add_u32 v22, v23, 2, v22\ns_lshl_b32 s48, s26, 5\nv_add_u32 v22, s48, v22")
    A("v_and_b32 v22, 0x1ff, v22")
    A(f"v_lshlrev_b32 v19, 1, v22\nv_add_u32 v18, {HB}, v19")
    A("v_lshrrev_b32 v24, 3, v1\nv_lshlrev_b32 v24, 11, v24\nv_lshl_add_u32 v20, v23, 4, v24")
    A(f"s_and_b32 s48, s26, 15\ns_lshl_b32 s48, s48, 7\ns_add_u32 s48, s48, {ZOFF}\ns_add_u32 s49, s48, 0x4000\ns_add_u32 s50, s48, 0x8000\ns_add_u32 s51, s48, 0xc000")
    A(f"v_mov_b32 v14, 0\ns_mov_b32 exec_hi, 0\nv_mov_b32 v14, v15\ns_mov_b32 exec_hi, -1")
    sets4 = [48, 64, 80, 96][:PP4]
    for b_ in sets4:
        for v in range(4): A(f"v_mov_b32 v{b_+12+v}, 0")
    def s4issue(b_):
        for i in range(3): A(f"buffer_load_dwordx4 v[{b_+4*i}:{b_+3+4*i}], v20, s[36:39], s{48+i} offen sc1")
        A(f"s_mov_b32 exec_hi, 0\nbuffer_load_dwordx4 v[{b_+12}:{b_+15}], v20, s[36:39], s51 offen sc1\ns_mov_b32 exec_hi, -1")
    if '4' in warm: A(f"v_mov_b32 v13, v19\nv_mov_b32 v19, 0x7ff00000\ns_mov_b32 s54, 1\ns_branch L_s4pollok{PP4-1}\nL_s4real:\nv_mov_b32 v19, v13\ns_mov_b32 s54, 0")
    if prez: s4issue(112)
    A("s_barrier")
    if gate:
        A(f"v_lshlrev_b32 v23, 7, v1\ns_mov_b32 s52, {YOFF + 0x2000 * (yforce or 0)}\ns_mov_b32 s53, {spin}")
        A("L_gpoll:\ns_sub_u32 s53, s53, 1\ns_cbranch_scc1 L_gpollgo")
        if ydual and yforce is None: A("s_xor_b32 s52, s52, 0x2000")
        A("buffer_load_dwordx4 v[32:35], v23, s[36:39], s52 offen sc1\ns_waitcnt vmcnt(0)")
        chk_tag(range(32, 36), 15, 24)
        A("s_cmp_eq_u64 vcc, exec\ns_cbranch_scc1 L_gpoll\nL_gpollgo:")
        if ydual: A(f"v_mov_b32 v24, s52\nv_mov_b32 v25, {FLG}\nds_write_b32 v25, v24 offset:8\ns_waitcnt lgkmcnt(0)")
    stamp(8)
    A("s_barrier\ns_barrier")
    stamp(9)
    A("ds_read_u16 v21, v18")
    if eearly: A("s_cmp_eq_u32 s26, 27\ns_cbranch_scc1 L_epoch")
    A("s_cmp_ge_u32 s26, 16\ns_cbranch_scc1 L_svend")
    ppoll("L_s4poll", sets4, 4, s4issue, lambda b_: chk_tag(range(b_, b_ + 16), 15, 24, 14), sum16)
    for v in range(4): A(f"v_add_f32 v{32+v}, v{32+v}, v{40+v}")
    A("s_waitcnt lgkmcnt(0)\nv_lshlrev_b32 v21, 16, v21"); tred(32)
    A(f"v_add_f32_dpp v32, v32, v32 row_ror:8 {FULL}")
    rbf(32); A("v_add_f32 v32, v32, v21\nv_cvt_pk_bf16_f32 v32, v32, v32")
    setexec(0x00ff00ff00ff00ff)
    A("buffer_store_short v32, v19, s[44:47], 0 offen" + (outsc if outsc else ""))
    setexec(-1)
    if '4' in warm: A("s_cmp_lg_u32 s54, 0\ns_cbranch_scc1 L_s4real")
    stamp(10)
    A("s_branch L_svend" if eearly else "s_cmp_lg_u32 s26, 0\ns_cbranch_scc1 L_svend")
    A("L_epoch:")
    setexec(1)
    A("buffer_store_dword v17, v6, s[36:39], 0 offen sc1")
    A("L_svend:")
    if probe is not None:
        A(f"s_cmp_lg_u32 s2, {probe_wg}\ns_cbranch_scc1 L_end\ns_waitcnt lgkmcnt(0)")
        A(f"s_sub_u32 s48, s{64+2*probe[0]}, s{64+2*probe[1]}\ns_mul_i32 s48, s48, {probe[2]}\ns_add_u32 s48, s48, 10000")
        A("L_probe:\ns_memrealtime s[50:51]\ns_waitcnt lgkmcnt(0)\ns_sub_u32 s49, s50, s64\ns_cmp_lt_u32 s49, s48\ns_cbranch_scc1 L_probe")
    elif stamps:
        setexec(1)
        A(f"s_add_u32 s24, s24, 0x10000000\ns_addc_u32 s25, s25, 0\ns_mul_i32 s48, s2, {NST*8}\nv_mov_b32 v5, s48\ns_waitcnt lgkmcnt(0)")
        for i in range(0, 24, 4):
            for n in range(4): A(f"v_mov_b32 v{8+n}, s{64+i+n}")
            A(f"global_store_dwordx4 v5, v[8:11], s[24:25] offset:{i*4}")
    A("L_end:")
    A("s_endpgm")
    body = A.finish()
    nv = 168
    out = HDR + DOC
    out += f"; @launch grid=(256,1,1) block=(576,1,1) lds={LDS_SIZE}\n"
    out += f'.amdgcn_target "amdgcn-amd-amdhsa--gfx950"\n.text\n.globl {KN}\n.p2align 8\n.type {KN},@function\n' + body
    out += f'''.section .rodata,"a"
.p2align 6
.amdhsa_kernel {KN}
  .amdhsa_next_free_vgpr {nv}
  .amdhsa_next_free_sgpr 96
  .amdhsa_accum_offset {nv}
  .amdhsa_group_segment_fixed_size 0
  .amdhsa_kernarg_size 88
  .amdhsa_user_sgpr_count 2
  .amdhsa_user_sgpr_kernarg_segment_ptr 1
  .amdhsa_system_sgpr_workgroup_id_x 1
.end_amdhsa_kernel
'''
    return out
if __name__ == "__main__":
    from build import build
    cfgs = json.loads(sys.argv[1])
    for name, c in cfgs.items():
        open(name + ".s", "w").write(gen(**c)); build(name + ".s"); print(name, c)
```
